```python
import torch

def _softmax(x, axis=-1):
    return torch.softmax(x, dim=axis)
def _gelu(x):
    return torch.nn.functional.gelu(x, approximate="tanh")
def _silu(x):
    return torch.nn.functional.silu(x)
def _sigmoid(x):
    return torch.sigmoid(x)
def _layernorm(x, axis=-1, eps=1e-5):
    m = x.mean(dim=axis, keepdim=True)
    v = x.var(dim=axis, keepdim=True, unbiased=False)
    return (x - m) / torch.sqrt(v + eps)
def _scatter_add(tgt, idx, src, axis=0):
    return tgt.clone().index_add_(axis, idx, src)
def _segment_sum(src, seg, n):
    out = torch.zeros((n,) + src.shape[1:], dtype=src.dtype)
    return out.index_add_(0, seg, src)
def _pad(x, pw):
    flat = tuple(v for pair in reversed(pw) for v in pair)
    return torch.nn.functional.pad(x, flat)

kernel_name = 'interleave_layers__linear_kernel_hedgehog__glu_gated_geglu__prompt'

def setup_inputs():

    _w = (lambda a: (lambda t: t.to(torch.bfloat16) if t.is_floating_point() else t)(torch.as_tensor(a)))
    def _A_setup():
        B, S, D, H = 1, 2048, 640, 32
        Dh = D // H
        return {
            "x": _w((lambda *s: torch.randn(*s, dtype=torch.bfloat16) * 0.05)(B, S, D)),
            "wqkv": _w((lambda *s: torch.randn(*s, dtype=torch.bfloat16) * 0.4)(D, 3 * D)),
            "w_phi": _w((lambda *s: torch.randn(*s, dtype=torch.bfloat16) * 0.4)(H, Dh, Dh) * (Dh ** -0.5)),
            "wo": _w((lambda *s: torch.randn(*s, dtype=torch.bfloat16) * 0.05)(D, D)),
        }
    _A_in = _A_setup()

    def _B_setup():
        B, S, Dm, Df = 1, 2048, 640, 1728
        return {
            "x": _w((lambda *s: torch.randn(*s, dtype=torch.bfloat16) * 0.05)(B, S, Dm)),
            "w_gate": _w((lambda *s: torch.randn(*s, dtype=torch.bfloat16) * 1.6)(Dm, Df) * (Dm ** -0.5)),
            "w_up": _w((lambda *s: torch.randn(*s, dtype=torch.bfloat16) * 1.6)(Dm, Df) * (Dm ** -0.5)),
            "w_down": _w((lambda *s: torch.randn(*s, dtype=torch.bfloat16) * 1.6)(Df, Dm) * (Df ** -0.5)),
        }
    _B_in = _B_setup()

    return {
        "A_x": _A_in["x"],
        "A_wqkv": _A_in["wqkv"],
        "A_w_phi": _A_in["w_phi"],
        "A_wo": _A_in["wo"],
        "B_x": _B_in["x"],
        "B_w_gate": _B_in["w_gate"],
        "B_w_up": _B_in["w_up"],
        "B_w_down": _B_in["w_down"],
    }

def reference(A_x, A_wqkv, A_w_phi, A_wo, B_x, B_w_gate, B_w_up, B_w_down):
    def _A_ref(x, wqkv, w_phi, wo):
        B, S, D = x.shape
        H = 32; Dh = D // H
        qkv = (lambda x, *d: x.permute(*d))((x @ wqkv).reshape(B, S, 3, H, Dh), 2, 0, 3, 1, 4)
        q, k, v = qkv[0], qkv[1], qkv[2]
        pq = torch.einsum("bhsd,hdf->bhsf", q, w_phi)
        pk = torch.einsum("bhsd,hdf->bhsf", k, w_phi)
        phi_q = torch.concatenate([_softmax(pq, axis=-1), _softmax(-pq, axis=-1)], axis=-1)
        phi_k = torch.concatenate([_softmax(pk, axis=-1), _softmax(-pk, axis=-1)], axis=-1)
        kv = torch.einsum("bhsf,bhsd->bhfd", phi_k, v)
        z  = torch.einsum("bhsf->bhf", phi_k)
        num = torch.einsum("bhqf,bhfd->bhqd", phi_q, kv)
        den = torch.einsum("bhqf,bhf->bhq", phi_q, z)[..., None] + 1e-6
        o = num / den
        return (lambda x, *d: x.permute(*d))(o, 0, 2, 1, 3).reshape(B, S, D) @ wo

    def _B_ref(x, w_gate, w_up, w_down):
        g = torch.einsum("bsd,df->bsf", x, w_gate)
        u = torch.einsum("bsd,df->bsf", x, w_up)
        h = _gelu(g) * u
        return torch.einsum("bsf,fd->bsd", h, w_down)

    x = A_x
    x = x + _A_ref(_layernorm(x, axis=-1), A_wqkv, A_w_phi, A_wo)
    x = x + _B_ref(_layernorm(x, axis=-1), B_w_gate, B_w_up, B_w_down)
    x = x + _A_ref(_layernorm(x, axis=-1), A_wqkv, A_w_phi, A_wo)
    x = x + _B_ref(_layernorm(x, axis=-1), B_w_gate, B_w_up, B_w_down)
    return x
```

```python
import sys

M = 2048; D = 640; H = 32; DH = 20; DF = 1728
WS_XN  = 0x0000000
WS_QKV = 0x0400000
WS_KVP = 0x0C00000
WS_O   = 0x1000000
WS_X1  = 0x1400000
WS_H   = 0x1800000
WS_X2  = 0x2000000
WS_SIZE= 268435456

class Asm:
    def __init__(self):
        self.lines = []
        self.kernels = []
    def __call__(self, s):
        self.lines.append("    " + s)
    def label(self, l):
        self.lines.append(l + ":")
    def raw(self, s):
        self.lines.append(s)

A = Asm()

def kernel_begin(name):
    A.raw(".globl %s" % name)
    A.raw(".p2align 8")
    A.raw(".type %s,@function" % name)
    A.label(name)

def load_ptrs():
    A("s_load_dwordx16 s[16:31], s[0:1], 0")
    A("s_load_dwordx4 s[32:35], s[0:1], 64")
    A("s_load_dwordx2 s[36:37], s[0:1], 80")
    A("s_waitcnt lgkmcnt(0)")

PTR = {"x":16, "wqkv":18, "wphi":20, "wo":22, "bx":24, "gate":26, "up":28, "down":30, "out":32, "ws":36}

def make_srd(dst, ptr, off, size):
    lo = PTR[ptr]
    if off:
        A("s_add_u32 s%d, s%d, 0x%x" % (dst, lo, off))
        A("s_addc_u32 s%d, s%d, 0" % (dst+1, lo+1))
    else:
        A("s_mov_b32 s%d, s%d" % (dst, lo))
        A("s_mov_b32 s%d, s%d" % (dst+1, lo+1))
    A("s_mov_b32 s%d, 0x%x" % (dst+2, size))
    A("s_mov_b32 s%d, 0x00020000" % (dst+3))

def vr(a, n=1):
    return "v%d" % a if n == 1 else "v[%d:%d]" % (a, a+n-1)

def gen_ln(name, src, dst):
    kernel_begin(name)
    A("s_cmp_ge_u32 s2, %d" % (M//4))
    A("s_cbranch_scc1 %s_end" % name)
    load_ptrs()
    make_srd(40, src[0], src[1], M*D*2)
    make_srd(44, dst[0], dst[1], M*D*2)
    A("v_lshrrev_b32 v1, 6, v0")
    A("v_and_b32 v2, 63, v0")
    A("s_lshl_b32 s3, s2, 2")
    A("v_add_u32 v1, s3, v1")
    A("v_mul_u32_u24 v3, 1280, v1")
    A("v_mul_u32_u24 v4, 20, v2")
    A("v_add_u32 v3, v3, v4")
    A("buffer_load_dwordx4 v[8:11], v3, s[40:43], 0 offen")
    A("buffer_load_dword v12, v3, s[40:43], 0 offen offset:16")
    A("s_waitcnt vmcnt(0)")
    for i in range(5):
        A("v_lshlrev_b32 v%d, 16, v%d" % (16+2*i, 8+i))
        A("v_and_b32 v%d, 0xffff0000, v%d" % (17+2*i, 8+i))
    A("v_add_f32 v30, v16, v17")
    for i in range(2, 10):
        A("v_add_f32 v30, v30, v%d" % (16+i))
    def wave_sum(v, tmp):
        for off in (0x041F, 0x081F, 0x101F, 0x201F, 0x401F):
            A("ds_swizzle_b32 v%d, v%d offset:0x%x" % (tmp, v, off))
            A("s_waitcnt lgkmcnt(0)")
            A("v_add_f32 v%d, v%d, v%d" % (v, v, tmp))
        A("s_nop 1")
        A("v_readlane_b32 s4, v%d, 0" % v)
        A("v_readlane_b32 s5, v%d, 32" % v)
        A("s_nop 1")
        A("v_mov_b32 v%d, s4" % v)
        A("v_add_f32 v%d, s5, v%d" % (v, v))
    wave_sum(30, 31)
    A("v_mul_f32 v30, 0x3acccccd, v30")
    for i in range(10):
        A("v_sub_f32 v%d, v%d, v30" % (16+i, 16+i))
    A("v_mul_f32 v32, v16, v16")
    for i in range(1, 10):
        A("v_fmac_f32 v32, v%d, v%d" % (16+i, 16+i))
    wave_sum(32, 31)
    A("v_mov_b32 v33, 0x3727c5ac")
    A("v_fmac_f32 v33, 0x3acccccd, v32")
    A("v_rsq_f32 v33, v33")
    A("s_nop 0")
    for i in range(10):
        A("v_mul_f32 v%d, v%d, v33" % (16+i, 16+i))
    for i in range(5):
        A("v_cvt_pk_bf16_f32 v%d, v%d, v%d" % (8+i, 16+2*i, 17+2*i))
    A("buffer_store_dwordx4 v[8:11], v3, s[44:47], 0 offen")
    A("buffer_store_dword v12, v3, s[44:47], 0 offen offset:16")
    A.label(name + "_end")
    A("s_endpgm")
    A.kernels.append((name, 40, 48, 40))

ASTR = 144
BSTR = 288

def gen_gemm(name, BM, N, K, a_src, lda, b_srcs, ldb, c_dst, ldc, epi, r_src=None, csize=None, asize=None):
    MT = M // BM
    geglu = (epi == "geglu")
    NTILES = (N // 64) if geglu else (N // 128)
    nwg = MT * NTILES
    NK = K // 64
    TM = BM // 2
    mt_n = TM // 16
    nt_n = 4
    ABUF = BM * ASTR
    BBUF = 64 * BSTR
    STAGE = ABUF + BBUF
    nA = BM // 32
    kernel_begin(name)
    A("s_cmp_ge_u32 s2, %d" % nwg)
    A("s_cbranch_scc1 %s_end" % name)
    load_ptrs()
    make_srd(40, a_src[0], a_src[1], asize)
    make_srd(44, b_srcs[0][0], b_srcs[0][1], K*ldb)
    if geglu:
        make_srd(48, b_srcs[1][0], b_srcs[1][1], K*ldb)
    make_srd(52, c_dst[0], c_dst[1], csize)
    if r_src is not None:
        make_srd(56, r_src[0], r_src[1], M*D*2)
    A("s_and_b32 s4, s2, %d" % (MT-1))
    A("s_lshr_b32 s5, s2, %d" % (MT.bit_length()-1))
    A("v_lshrrev_b32 v1, 6, v0")
    A("s_nop 0")
    A("v_readfirstlane_b32 s6, v1")
    A("v_and_b32 v2, 63, v0")
    A("v_and_b32 v3, 15, v0")
    A("v_bfe_u32 v4, v0, 4, 2")
    A("v_lshrrev_b32 v5, 3, v0")
    A("v_and_b32 v6, 7, v0")
    A("s_mul_i32 s7, s4, %d" % (BM*lda))
    A("v_mul_u32_u24 v7, %d, v5" % lda)
    A("v_lshl_add_u32 v7, v6, 4, v7")
    A("v_add_u32 v7, s7, v7")
    A("v_mul_u32_u24 v8, %d, v5" % ASTR)
    A("v_lshl_add_u32 v8, v6, 4, v8")
    A("v_and_b32 v9, 127, v0")
    A("v_lshrrev_b32 v9, 3, v9")
    A("s_lshr_b32 s8, s6, 1")
    A("v_mul_u32_u24 v10, %d, v9" % ldb)
    A("v_lshl_add_u32 v10, v6, 4, v10")
    if geglu:
        A("s_lshl_b32 s9, s5, 7")
        A("s_cmp_eq_u32 s8, 0")
        for j in range(4):
            A("s_cselect_b32 s%d, s%d, s%d" % (60+j, 44+j, 48+j))
    else:
        A("s_lshl_b32 s9, s5, 8")
        A("s_lshl_b32 s10, s8, 7")
        A("s_add_u32 s9, s9, s10")
        for j in range(4):
            A("s_mov_b32 s%d, s%d" % (60+j, 44+j))
    A("v_add_u32 v10, s9, v10")
    A("v_mul_u32_u24 v11, %d, v9" % BSTR)
    A("v_lshl_add_u32 v11, v6, 4, v11")
    A("s_lshl_b32 s10, s8, 7")
    A("v_add_u32 v11, s10, v11")
    A("v_add_u32 v11, %d, v11" % ABUF)
    for i in range(nA):
        A("s_mov_b32 s%d, %d" % (64+i, i*32*lda))
    for i in range(4):
        A("s_mov_b32 s%d, %d" % (68+i, i*16*ldb))
    A("s_lshr_b32 s10, s6, 1")
    A("s_and_b32 s11, s6, 1")
    A("s_mul_i32 s12, s10, %d" % (TM*ASTR))
    A("v_mul_u32_u24 v12, %d, v3" % ASTR)
    A("v_lshl_add_u32 v12, v4, 3, v12")
    A("v_add_u32 v12, s12, v12")
    A("v_lshrrev_b32 v13, 2, v3")
    A("v_lshl_add_u32 v13, v4, 2, v13")
    A("v_mul_u32_u24 v13, %d, v13" % BSTR)
    A("v_and_b32 v14, 3, v3")
    A("v_lshl_add_u32 v13, v14, 3, v13")
    A("s_lshl_b32 s13, s11, %d" % (6 if geglu else 7))
    A("s_add_u32 s13, s13, %d" % ABUF)
    A("v_add_u32 v13, s13, v13")
    ncols = [0, 16, 64, 80] if geglu else [0, 16, 32, 48]
    ACC = 16
    nacc = mt_n * nt_n * 4
    FR = ACC + nacc
    FSET = (mt_n + 4) * 4
    ST = FR + 2*FSET
    NV = ST + (nA + 4) * 4
    for r in range(nacc):
        A("v_mov_b32 v%d, 0" % (ACC + r))
    def gload():
        for i in range(nA):
            A("buffer_load_dwordx4 %s, v7, s[40:43], s%d offen" % (vr(ST+4*i, 4), 64+i))
        for i in range(4):
            A("buffer_load_dwordx4 %s, v10, s[60:63], s%d offen" % (vr(ST+4*(nA+i), 4), 68+i))
        A("v_add_u32 v7, 128, v7")
        A("v_add_u32 v10, %d, v10" % (64*ldb))
    def lwrite():
        for i in range(nA):
            A("ds_write_b128 v8, %s offset:%d" % (vr(ST+4*i, 4), i*32*ASTR))
        for i in range(4):
            A("ds_write_b128 v11, %s offset:%d" % (vr(ST+4*(nA+i), 4), i*16*BSTR))
    def freads(ks, fset):
        base = FR + fset*FSET
        for nt in range(4):
            for t in range(2):
                A("ds_read_b64_tr_b16 %s, v13 offset:%d" % (vr(base + mt_n*4 + nt*4 + 2*t, 2), (ks*32+16*t)*BSTR + ncols[nt]*2))
        for mt in range(mt_n):
            for t in range(2):
                A("ds_read_b64 %s, v12 offset:%d" % (vr(base + mt*4 + 2*t, 2), mt*16*ASTR + ks*64 + t*32))
    def mfmas(fset):
        base = FR + fset*FSET
        for mt in range(mt_n):
            for nt in range(4):
                acc = vr(ACC + (mt*4+nt)*4, 4)
                A("v_mfma_f32_16x16x32_bf16 %s, %s, %s, %s" % (acc, vr(base + mt_n*4 + nt*4, 4), vr(base + mt*4, 4), acc))
    gload()
    A("s_waitcnt vmcnt(0)")
    lwrite()
    A("s_mov_b32 s14, %d" % STAGE)
    A("s_mov_b32 s15, 0")
    A("s_waitcnt lgkmcnt(0)")
    A("s_barrier")
    A.label(name + "_loop")
    A("s_cmp_lt_u32 s15, %d" % (NK-1))
    A("s_cbranch_scc0 %s_noload" % name)
    gload()
    A.label(name + "_noload")
    freads(0, 0)
    A("s_waitcnt lgkmcnt(0)")
    freads(1, 1)
    mfmas(0)
    A("s_waitcnt lgkmcnt(0)")
    mfmas(1)
    A("v_add_u32 v8, s14, v8")
    A("v_add_u32 v11, s14, v11")
    A("s_cmp_lt_u32 s15, %d" % (NK-1))
    A("s_cbranch_scc0 %s_nowrite" % name)
    A("s_waitcnt vmcnt(0)")
    lwrite()
    A.label(name + "_nowrite")
    A("v_add_u32 v12, s14, v12")
    A("v_add_u32 v13, s14, v13")
    A("s_sub_u32 s14, 0, s14")
    A("s_add_u32 s15, s15, 1")
    A("s_waitcnt lgkmcnt(0)")
    A("s_barrier")
    A("s_cmp_lt_u32 s15, %d" % NK)
    A("s_cbranch_scc1 %s_loop" % name)
    A("s_nop 7")
    A("s_nop 7")
    A("s_mul_i32 s7, s4, %d" % BM)
    A("s_mul_i32 s12, s10, %d" % TM)
    A("s_add_u32 s7, s7, s12")
    A("v_add_u32 v5, s7, v3")
    T0 = ST
    if geglu:
        A("v_mul_u32_u24 v5, %d, v5" % ldc)
        A("s_lshl_b32 s12, s5, 7")
        A("s_lshl_b32 s13, s11, 6")
        A("s_add_u32 s12, s12, s13")
        A("v_lshl_add_u32 v5, v4, 3, v5")
        A("v_add_u32 v5, s12, v5")
        A("v_mov_b32 v6, 0x3d372713")
        for mt in range(mt_n):
            for nt in range(2):
                g = ACC + (mt*4+nt)*4
                u = ACC + (mt*4+nt+2)*4
                for r in range(4):
                    t = T0 + r
                    A("v_mul_f32 v%d, v%d, v%d" % (t, g+r, g+r))
                    A("v_fma_f32 v%d, v%d, v6, 1.0" % (t, t))
                    A("v_mul_f32 v%d, v%d, v%d" % (t, t, g+r))
                    A("v_mul_f32 v%d, 0xc0135761, v%d" % (t, t))
                    A("v_exp_f32 v%d, v%d" % (t, t))
                    A("s_nop 0")
                    A("v_add_f32 v%d, 1.0, v%d" % (t, t))
                    A("v_rcp_f32 v%d, v%d" % (t, t))
                    A("s_nop 0")
                    A("v_mul_f32 v%d, v%d, v%d" % (t, t, g+r))
                    A("v_mul_f32 v%d, v%d, v%d" % (t, t, u+r))
                A("v_cvt_pk_bf16_f32 v%d, v%d, v%d" % (T0+4, T0, T0+1))
                A("v_cvt_pk_bf16_f32 v%d, v%d, v%d" % (T0+5, T0+2, T0+3))
                A("buffer_store_dwordx2 %s, v5, s[52:55], 0 offen offset:%d" % (vr(T0+4, 2), nt*32))
                A("s_nop 1")
            if mt + 1 < mt_n:
                A("v_add_u32 v5, %d, v5" % (16*ldc))
    else:
        A("v_mul_u32_u24 v5, %d, v5" % ldc)
        A("s_lshl_b32 s12, s5, 8")
        A("s_lshl_b32 s13, s11, 7")
        A("s_add_u32 s12, s12, s13")
        A("v_lshl_add_u32 v5, v4, 3, v5")
        A("v_add_u32 v5, s12, v5")
        for mt in range(mt_n):
            if epi == "resid":
                for nt in range(4):
                    A("buffer_load_dwordx2 %s, v5, s[56:59], 0 offen offset:%d" % (vr(T0+2*nt, 2), nt*32))
                A("s_waitcnt vmcnt(0)")
            for nt in range(4):
                a = ACC + (mt*4+nt)*4
                if epi == "resid":
                    for r in range(2):
                        A("v_lshlrev_b32 v%d, 16, v%d" % (T0+8, T0+2*nt+r))
                        A("v_and_b32 v%d, 0xffff0000, v%d" % (T0+9, T0+2*nt+r))
                        A("v_add_f32 v%d, v%d, v%d" % (a+2*r, a+2*r, T0+8))
                        A("v_add_f32 v%d, v%d, v%d" % (a+2*r+1, a+2*r+1, T0+9))
                A("v_cvt_pk_bf16_f32 v%d, v%d, v%d" % (T0+10, a, a+1))
                A("v_cvt_pk_bf16_f32 v%d, v%d, v%d" % (T0+11, a+2, a+3))
                A("buffer_store_dwordx2 %s, v5, s[52:55], 0 offen offset:%d" % (vr(T0+10, 2), nt*32))
                A("s_nop 1")
            if mt + 1 < mt_n:
                A("v_add_u32 v5, %d, v5" % (16*ldc))
    A.label(name + "_end")
    A("s_endpgm")
    nv = max(NV, ST+12)
    A.kernels.append((name, (nv+7)//8*8, 80, (nv+7)//8*8))
    return nwg, 2*STAGE

def emit_phi(src_regs, W_lds_base_v, P, tmp):
    for f in range(20):
        A("v_mov_b32 v%d, 0" % (P+f))
    for d in range(20):
        for fq in range(5):
            A("ds_read_b128 %s, v%d offset:%d" % (vr(tmp, 4), W_lds_base_v, (d*20 + fq*4)*4))
            A("s_waitcnt lgkmcnt(0)")
            for j in range(4):
                A("v_fmac_f32 v%d, v%d, v%d" % (P+fq*4+j, src_regs[d], tmp+j))
    for f in range(0, 20, 2):
        A("v_cvt_pk_bf16_f32 v%d, v%d, v%d" % (tmp, P+f, P+f+1))
        A("v_lshlrev_b32 v%d, 16, v%d" % (P+f, tmp))
        A("v_and_b32 v%d, 0xffff0000, v%d" % (P+f+1, tmp))
    mx, mn = tmp, tmp+1
    A("v_max_f32 v%d, v%d, v%d" % (mx, P, P+1))
    A("v_min_f32 v%d, v%d, v%d" % (mn, P, P+1))
    for f in range(2, 20):
        A("v_max_f32 v%d, v%d, v%d" % (mx, mx, P+f))
        A("v_min_f32 v%d, v%d, v%d" % (mn, mn, P+f))
    L2E = "0x3fb8aa3b"
    for f in range(20):
        A("v_sub_f32 v%d, v%d, v%d" % (P+20+f, mn, P+f))
        A("v_mul_f32 v%d, %s, v%d" % (P+20+f, L2E, P+20+f))
        A("v_exp_f32 v%d, v%d" % (P+20+f, P+20+f))
        A("v_sub_f32 v%d, v%d, v%d" % (P+f, P+f, mx))
        A("v_mul_f32 v%d, %s, v%d" % (P+f, L2E, P+f))
        A("v_exp_f32 v%d, v%d" % (P+f, P+f))
    s1, s2 = tmp+2, tmp+3
    A("s_nop 0")
    A("v_add_f32 v%d, v%d, v%d" % (s1, P, P+1))
    A("v_add_f32 v%d, v%d, v%d" % (s2, P+20, P+21))
    for f in range(2, 20):
        A("v_add_f32 v%d, v%d, v%d" % (s1, s1, P+f))
        A("v_add_f32 v%d, v%d, v%d" % (s2, s2, P+20+f))
    A("v_rcp_f32 v%d, v%d" % (s1, s1))
    A("v_rcp_f32 v%d, v%d" % (s2, s2))
    A("s_nop 0")
    for f in range(20):
        A("v_mul_f32 v%d, v%d, v%d" % (P+f, P+f, s1))
        A("v_mul_f32 v%d, v%d, v%d" % (P+20+f, P+20+f, s2))

def emit_load_wphi(lds_base_bytes):
    make_srd(48, "wphi", 0, H*400*2)
    A("s_mul_i32 s7, s4, 800")
    A("v_lshlrev_b32 v40, 2, v0")
    A("v_cmp_gt_u32 vcc, 200, v0")
    A("s_and_saveexec_b64 s[8:9], vcc")
    A("buffer_load_dword v41, v40, s[48:51], s7 offen")
    A("s_waitcnt vmcnt(0)")
    A("v_lshlrev_b32 v42, 16, v41")
    A("v_and_b32 v43, 0xffff0000, v41")
    A("v_lshlrev_b32 v40, 3, v0")
    A("ds_write_b64 v40, v[42:43] offset:%d" % lds_base_bytes)
    A("s_mov_b64 exec, s[8:9]")

def unpack20(dst, src):
    for i in range(10):
        A("v_lshlrev_b32 v%d, 16, v%d" % (dst+2*i, src+i))
        A("v_and_b32 v%d, 0xffff0000, v%d" % (dst+2*i+1, src+i))

KV_PHI = 2048; KV_V = 2048 + 48*512
def gen_kv(name):
    kernel_begin(name)
    A("s_cmp_ge_u32 s2, 256")
    A("s_cbranch_scc1 %s_end" % name)
    load_ptrs()
    A("s_and_b32 s4, s2, 31")
    A("s_lshr_b32 s5, s2, 5")
    emit_load_wphi(0)
    make_srd(40, "ws", WS_QKV, M*1920*2)
    make_srd(44, "ws", WS_KVP, 8*32*48*32*4)
    A("s_lshl_b32 s6, s5, 8")
    A("v_add_u32 v1, s6, v0")
    A("v_mul_u32_u24 v1, 3840, v1")
    A("s_mul_i32 s7, s4, 40")
    A("s_add_u32 s7, s7, 1280")
    A("v_add_u32 v1, s7, v1")
    for i in range(5):
        A("buffer_load_dwordx2 %s, v1, s[40:43], 0 offen offset:%d" % (vr(44+2*i, 2), 8*i))
    for i in range(5):
        A("buffer_load_dwordx2 %s, v1, s[40:43], 0 offen offset:%d" % (vr(54+2*i, 2), 1280+8*i))
    A("s_waitcnt vmcnt(0) lgkmcnt(0)")
    A("s_barrier")
    unpack20(64, 44)
    A("v_mov_b32 v2, 0")
    emit_phi([64+d for d in range(20)], 2, 84, 124)
    A("v_lshlrev_b32 v3, 1, v0")
    for f in range(0, 40, 2):
        A("v_cvt_pk_bf16_f32 v4, v%d, v%d" % (84+f, 85+f))
        A("ds_write_b16 v3, v4 offset:%d" % (KV_PHI + f*512))
        A("ds_write_b16_d16_hi v3, v4 offset:%d" % (KV_PHI + (f+1)*512))
    for i in range(10):
        A("ds_write_b16 v3, v%d offset:%d" % (54+i, KV_V + (2*i)*512))
        A("ds_write_b16_d16_hi v3, v%d offset:%d" % (54+i, KV_V + (2*i+1)*512))
    A("v_mov_b32 v4, 0x3f80")
    A("ds_write_b16 v3, v4 offset:%d" % (KV_V + 20*512))
    A("s_waitcnt lgkmcnt(0)")
    A("s_barrier")
    A("v_cmp_gt_u32 vcc, 64, v0")
    A("s_and_saveexec_b64 s[8:9], vcc")
    A("s_cbranch_execz %s_end" % name)
    A("v_and_b32 v5, 15, v0")
    A("v_lshrrev_b32 v6, 4, v0")
    A("v_lshlrev_b32 v7, 9, v5")
    A("v_lshl_add_u32 v7, v6, 4, v7")
    for r in range(24):
        A("v_mov_b32 v%d, 0" % (128+r))
    for ks in range(8):
        for mt in range(3):
            A("ds_read_b128 %s, v7 offset:%d" % (vr(152+4*mt, 4), KV_PHI + mt*16*512 + ks*64))
        for nt in range(2):
            A("ds_read_b128 %s, v7 offset:%d" % (vr(164+4*nt, 4), KV_V + nt*16*512 + ks*64))
        A("s_waitcnt lgkmcnt(0)")
        for mt in range(3):
            for nt in range(2):
                acc = vr(128 + (mt*2+nt)*4, 4)
                A("v_mfma_f32_16x16x32_bf16 %s, %s, %s, %s" % (acc, vr(152+4*mt, 4), vr(164+4*nt, 4), acc))
        A("s_nop 7")
    A("s_nop 7")
    A("s_nop 7")
    A("s_lshl_b32 s6, s2, 0")
    A("s_mul_i32 s6, s2, %d" % (48*32*4))
    A("v_lshlrev_b32 v8, 9, v6")
    A("v_lshl_add_u32 v8, v5, 2, v8")
    A("v_add_u32 v8, s6, v8")
    for mt in range(3):
        for nt in range(2):
            for r in range(4):
                A("buffer_store_dword v%d, v8, s[44:47], 0 offen offset:%d" % (128+(mt*2+nt)*4+r, r*128 + nt*64))
        A("v_add_u32 v8, 2048, v8")
    A.label(name + "_end")
    A("s_endpgm")
    A.kernels.append((name, 176, 64, 176))
    return 256, KV_V + 32*512

AT_KV = 2048
def gen_att(name):
    kernel_begin(name)
    A("s_cmp_ge_u32 s2, 256")
    A("s_cbranch_scc1 %s_end" % name)
    load_ptrs()
    A("s_and_b32 s4, s2, 31")
    A("s_lshr_b32 s5, s2, 5")
    emit_load_wphi(0)
    make_srd(40, "ws", WS_QKV, M*1920*2)
    make_srd(44, "ws", WS_KVP, 8*32*48*32*4)
    make_srd(52, "ws", WS_O, M*D*2)
    A("s_lshl_b32 s6, s5, 8")
    A("v_add_u32 v1, s6, v0")
    A("v_mul_u32_u24 v1, 3840, v1")
    A("s_mul_i32 s7, s4, 40")
    A("v_add_u32 v1, s7, v1")
    for i in range(5):
        A("buffer_load_dwordx2 %s, v1, s[40:43], 0 offen offset:%d" % (vr(44+2*i, 2), 8*i))
    A("s_mul_i32 s7, s4, %d" % (48*32*4))
    A("v_lshlrev_b32 v2, 2, v0")
    A("v_add_u32 v6, 4096, v2")
    for j in range(5):
        A("v_mov_b32 v%d, 0" % (54+j))
    for tb in range(8):
        for j in range(5):
            A("buffer_load_dword v%d, v%d, s[44:47], s7 offen offset:%d" % (60+j, 2 if j < 4 else 6, (j % 4)*1024))
        A("s_waitcnt vmcnt(0)")
        for j in range(5):
            A("v_add_f32 v%d, v%d, v%d" % (54+j, 54+j, 60+j))
        A("s_add_u32 s7, s7, %d" % (32*48*32*4))
    A("v_and_b32 v3, 31, v0")
    A("v_lshrrev_b32 v4, 5, v0")
    A("v_mul_u32_u24 v4, 96, v4")
    A("v_lshl_add_u32 v4, v3, 2, v4")
    A("v_cmp_gt_u32 vcc, 24, v3")
    A("s_and_saveexec_b64 s[8:9], vcc")
    for j in range(5):
        A("v_cvt_pk_bf16_f32 v5, v%d, v%d" % (54+j, 54+j))
        A("v_and_b32 v5, 0xffff0000, v5")
        A("ds_write_b32 v4, v5 offset:%d" % (AT_KV + j*8*96))
    A("s_mov_b64 exec, s[8:9]")
    A("s_waitcnt vmcnt(0) lgkmcnt(0)")
    A("s_barrier")
    unpack20(64, 44)
    A("v_mov_b32 v2, 0")
    emit_phi([64+d for d in range(20)], 2, 84, 124)
    for f in range(0, 40, 2):
        A("v_cvt_pk_bf16_f32 v124, v%d, v%d" % (84+f, 85+f))
        A("v_lshlrev_b32 v%d, 16, v124" % (84+f))
        A("v_and_b32 v%d, 0xffff0000, v124" % (85+f))
    for d in range(20):
        A("v_mov_b32 v%d, 0" % (64+d))
    A("v_mov_b32 v128, 0x358637bd")
    for f in range(40):
        for q in range(6):
            A("ds_read_b128 %s, v2 offset:%d" % (vr(132+4*q, 4), AT_KV + f*96 + q*16))
        A("s_waitcnt lgkmcnt(0)")
        for d in range(20):
            A("v_fmac_f32 v%d, v%d, v%d" % (64+d, 84+f, 132+d))
        A("v_fmac_f32 v128, v%d, v%d" % (84+f, 132+20))
    A("v_rcp_f32 v128, v128")
    A("s_nop 0")
    for d in range(20):
        A("v_mul_f32 v%d, v%d, v128" % (64+d, 64+d))
    for i in range(10):
        A("v_cvt_pk_bf16_f32 v%d, v%d, v%d" % (44+i, 64+2*i, 65+2*i))
    A("s_lshl_b32 s6, s5, 8")
    A("v_add_u32 v1, s6, v0")
    A("v_mul_u32_u24 v1, 1280, v1")
    A("s_mul_i32 s7, s4, 40")
    A("v_add_u32 v1, s7, v1")
    for i in range(5):
        A("buffer_store_dwordx2 %s, v1, s[52:55], 0 offen offset:%d" % (vr(44+2*i, 2), 8*i))
    A.label(name + "_end")
    A("s_endpgm")
    A.kernels.append((name, 160, 64, 160))
    return 256, 2048 + 40*96

launches = []
def add(name, nwg, lds):
    launches.append("; @launch kernel=%s grid=(%d,1,1) block=(256,1,1) lds=%d" % (name, nwg, lds))

for L in range(2):
    xin = ("x", 0) if L == 0 else ("ws", WS_X2)
    xout = ("ws", WS_X2) if L == 0 else ("out", 0)
    n = "ln1_%d_kernel" % L; gen_ln(n, xin, ("ws", WS_XN)); add(n, M//4, 0)
    n = "qkv_%d_kernel" % L
    g, l = gen_gemm(n, 128, 1920, 640, ("ws", WS_XN), 1280, [("wqkv", 0)], 3840, ("ws", WS_QKV), 3840, "store", csize=M*1920*2, asize=M*D*2); add(n, g, l)
    n = "kv_%d_kernel" % L; g, l = gen_kv(n); add(n, g, l)
    n = "att_%d_kernel" % L; g, l = gen_att(n); add(n, g, l)
    n = "wo_%d_kernel" % L
    g, l = gen_gemm(n, 64, 640, 640, ("ws", WS_O), 1280, [("wo", 0)], 1280, ("ws", WS_X1), 1280, "resid", r_src=xin, csize=M*D*2, asize=M*D*2); add(n, g, l)
    n = "ln2_%d_kernel" % L; gen_ln(n, ("ws", WS_X1), ("ws", WS_XN)); add(n, M//4, 0)
    n = "gu_%d_kernel" % L
    g, l = gen_gemm(n, 128, 1728, 640, ("ws", WS_XN), 1280, [("gate", 0), ("up", 0)], 3456, ("ws", WS_H), 3456, "geglu", csize=M*DF*2, asize=M*D*2); add(n, g, l)
    n = "down_%d_kernel" % L
    g, l = gen_gemm(n, 64, 640, 1728, ("ws", WS_H), 3456, [("down", 0)], 1280, xout, 1280, "resid", r_src=("ws", WS_X1), csize=M*D*2, asize=M*DF*2); add(n, g, l)

out = []
out += launches
out.append('.amdgcn_target "amdgcn-amd-amdhsa--gfx950"')
out.append(".text")
out += A.lines
out.append('.section .rodata,"a"')
for (name, nv, ns, acc) in A.kernels:
    out.append(".p2align 6")
    out.append(".amdhsa_kernel %s" % name)
    out.append("  .amdhsa_next_free_vgpr %d" % nv)
    out.append("  .amdhsa_next_free_sgpr %d" % ns)
    out.append("  .amdhsa_accum_offset %d" % acc)
    out.append("  .amdhsa_group_segment_fixed_size 0")
    out.append("  .amdhsa_kernarg_size 88")
    out.append("  .amdhsa_user_sgpr_count 2")
    out.append("  .amdhsa_user_sgpr_kernarg_segment_ptr 1")
    out.append("  .amdhsa_system_sgpr_workgroup_id_x 1")
    out.append(".end_amdhsa_kernel")
open(sys.argv[1] if len(sys.argv) > 1 else "interleave_layers__linear_kernel_hedgehog__glu_gated_geglu__prompt.s", "w").write("\n".join(out) + "\n")
```

```python
import sys

M = 2048; D = 640; H = 32; DH = 20; DF = 1728
WS_XN  = 0x0000000
WS_QKV = 0x0400000
WS_KVP = 0x0C00000
WS_O   = 0x1000000
WS_X1  = 0x1400000
WS_H   = 0x1800000
WS_X2  = 0x2000000
WS_SIZE= 268435456

class Asm:
    def __init__(self):
        self.lines = []
        self.kernels = []
    def __call__(self, s):
        self.lines.append("    " + s)
    def label(self, l):
        self.lines.append(l + ":")
    def raw(self, s):
        self.lines.append(s)

A = Asm()

def kernel_begin(name):
    A.raw(".globl %s" % name)
    A.raw(".p2align 8")
    A.raw(".type %s,@function" % name)
    A.label(name)

def load_ptrs():
    A("s_load_dwordx16 s[16:31], s[0:1], 0")
    A("s_load_dwordx4 s[32:35], s[0:1], 64")
    A("s_load_dwordx2 s[36:37], s[0:1], 80")
    A("s_waitcnt lgkmcnt(0)")

PTR = {"x":16, "wqkv":18, "wphi":20, "wo":22, "bx":24, "gate":26, "up":28, "down":30, "out":32, "ws":36}

def make_srd(dst, ptr, off, size):
    lo = PTR[ptr]
    if off:
        A("s_add_u32 s%d, s%d, 0x%x" % (dst, lo, off))
        A("s_addc_u32 s%d, s%d, 0" % (dst+1, lo+1))
    else:
        A("s_mov_b32 s%d, s%d" % (dst, lo))
        A("s_mov_b32 s%d, s%d" % (dst+1, lo+1))
    A("s_mov_b32 s%d, 0x%x" % (dst+2, size))
    A("s_mov_b32 s%d, 0x00020000" % (dst+3))

def vr(a, n=1):
    return "v%d" % a if n == 1 else "v[%d:%d]" % (a, a+n-1)

def gen_ln(name, src, dst):
    kernel_begin(name)
    A("s_cmp_ge_u32 s2, %d" % (M//4))
    A("s_cbranch_scc1 %s_end" % name)
    load_ptrs()
    make_srd(40, src[0], src[1], M*D*2)
    make_srd(44, dst[0], dst[1], M*D*2)
    A("v_lshrrev_b32 v1, 6, v0")
    A("v_and_b32 v2, 63, v0")
    A("s_lshl_b32 s3, s2, 2")
    A("v_add_u32 v1, s3, v1")
    A("v_mul_u32_u24 v3, 1280, v1")
    A("v_mul_u32_u24 v4, 20, v2")
    A("v_add_u32 v3, v3, v4")
    A("buffer_load_dwordx4 v[8:11], v3, s[40:43], 0 offen")
    A("buffer_load_dword v12, v3, s[40:43], 0 offen offset:16")
    A("s_waitcnt vmcnt(0)")
    for i in range(5):
        A("v_lshlrev_b32 v%d, 16, v%d" % (16+2*i, 8+i))
        A("v_and_b32 v%d, 0xffff0000, v%d" % (17+2*i, 8+i))
    A("v_add_f32 v30, v16, v17")
    for i in range(2, 10):
        A("v_add_f32 v30, v30, v%d" % (16+i))
    def wave_sum(v, tmp):
        for off in (0x041F, 0x081F, 0x101F, 0x201F, 0x401F):
            A("ds_swizzle_b32 v%d, v%d offset:0x%x" % (tmp, v, off))
            A("s_waitcnt lgkmcnt(0)")
            A("v_add_f32 v%d, v%d, v%d" % (v, v, tmp))
        A("s_nop 1")
        A("v_readlane_b32 s4, v%d, 0" % v)
        A("v_readlane_b32 s5, v%d, 32" % v)
        A("s_nop 1")
        A("v_mov_b32 v%d, s4" % v)
        A("v_add_f32 v%d, s5, v%d" % (v, v))
    wave_sum(30, 31)
    A("v_mul_f32 v30, 0x3acccccd, v30")
    for i in range(10):
        A("v_sub_f32 v%d, v%d, v30" % (16+i, 16+i))
    A("v_mul_f32 v32, v16, v16")
    for i in range(1, 10):
        A("v_fmac_f32 v32, v%d, v%d" % (16+i, 16+i))
    wave_sum(32, 31)
    A("v_mov_b32 v33, 0x3727c5ac")
    A("v_fmac_f32 v33, 0x3acccccd, v32")
    A("v_rsq_f32 v33, v33")
    A("s_nop 0")
    for i in range(10):
        A("v_mul_f32 v%d, v%d, v33" % (16+i, 16+i))
    for i in range(5):
        A("v_cvt_pk_bf16_f32 v%d, v%d, v%d" % (8+i, 16+2*i, 17+2*i))
    A("buffer_store_dwordx4 v[8:11], v3, s[44:47], 0 offen")
    A("buffer_store_dword v12, v3, s[44:47], 0 offen offset:16")
    A.label(name + "_end")
    A("s_endpgm")
    A.kernels.append((name, 40, 48, 40))

ASTR = 144
BSTR = 288

def gen_gemm(name, BM, N, K, a_src, lda, b_srcs, ldb, c_dst, ldc, epi, r_src=None, csize=None, asize=None):
    MT = M // BM
    geglu = (epi == "geglu")
    NTILES = (N // 64) if geglu else (N // 128)
    nwg = MT * NTILES
    NK = K // 64
    TM = BM // 2
    mt_n = TM // 16
    nt_n = 4
    ABUF = BM * ASTR
    BBUF = 64 * BSTR
    STAGE = ABUF + BBUF
    nA = BM // 32
    kernel_begin(name)
    A("s_cmp_ge_u32 s2, %d" % nwg)
    A("s_cbranch_scc1 %s_end" % name)
    load_ptrs()
    make_srd(40, a_src[0], a_src[1], asize)
    make_srd(44, b_srcs[0][0], b_srcs[0][1], K*ldb)
    if geglu:
        make_srd(48, b_srcs[1][0], b_srcs[1][1], K*ldb)
    make_srd(52, c_dst[0], c_dst[1], csize)
    if r_src is not None:
        make_srd(56, r_src[0], r_src[1], M*D*2)
    A("s_and_b32 s4, s2, %d" % (MT-1))
    A("s_lshr_b32 s5, s2, %d" % (MT.bit_length()-1))
    A("v_lshrrev_b32 v1, 6, v0")
    A("s_nop 0")
    A("v_readfirstlane_b32 s6, v1")
    A("v_and_b32 v2, 63, v0")
    A("v_and_b32 v3, 15, v0")
    A("v_bfe_u32 v4, v0, 4, 2")
    A("v_lshrrev_b32 v5, 3, v0")
    A("v_and_b32 v6, 7, v0")
    A("s_mul_i32 s7, s4, %d" % (BM*lda))
    A("v_mul_u32_u24 v7, %d, v5" % lda)
    A("v_lshl_add_u32 v7, v6, 4, v7")
    A("v_add_u32 v7, s7, v7")
    A("v_mul_u32_u24 v8, %d, v5" % ASTR)
    A("v_lshl_add_u32 v8, v6, 4, v8")
    A("v_and_b32 v9, 127, v0")
    A("v_lshrrev_b32 v9, 3, v9")
    A("s_lshr_b32 s8, s6, 1")
    A("v_mul_u32_u24 v10, %d, v9" % ldb)
    A("v_lshl_add_u32 v10, v6, 4, v10")
    if geglu:
        A("s_lshl_b32 s9, s5, 7")
        A("s_cmp_eq_u32 s8, 0")
        for j in range(4):
            A("s_cselect_b32 s%d, s%d, s%d" % (60+j, 44+j, 48+j))
    else:
        A("s_lshl_b32 s9, s5, 8")
        A("s_lshl_b32 s10, s8, 7")
        A("s_add_u32 s9, s9, s10")
        for j in range(4):
            A("s_mov_b32 s%d, s%d" % (60+j, 44+j))
    A("v_add_u32 v10, s9, v10")
    A("v_mul_u32_u24 v11, %d, v9" % BSTR)
    A("v_lshl_add_u32 v11, v6, 4, v11")
    A("s_lshl_b32 s10, s8, 7")
    A("v_add_u32 v11, s10, v11")
    A("v_add_u32 v11, %d, v11" % ABUF)
    for i in range(nA):
        A("s_mov_b32 s%d, %d" % (64+i, i*32*lda))
    for i in range(4):
        A("s_mov_b32 s%d, %d" % (68+i, i*16*ldb))
    A("s_lshr_b32 s10, s6, 1")
    A("s_and_b32 s11, s6, 1")
    A("s_mul_i32 s12, s10, %d" % (TM*ASTR))
    A("v_mul_u32_u24 v12, %d, v3" % ASTR)
    A("v_lshl_add_u32 v12, v4, 3, v12")
    A("v_add_u32 v12, s12, v12")
    A("v_lshrrev_b32 v13, 2, v3")
    A("v_lshl_add_u32 v13, v4, 2, v13")
    A("v_mul_u32_u24 v13, %d, v13" % BSTR)
    A("v_and_b32 v14, 3, v3")
    A("v_lshl_add_u32 v13, v14, 3, v13")
    A("s_lshl_b32 s13, s11, %d" % (6 if geglu else 7))
    A("s_add_u32 s13, s13, %d" % ABUF)
    A("v_add_u32 v13, s13, v13")
    ncols = [0, 16, 64, 80] if geglu else [0, 16, 32, 48]
    ACC = 16
    nacc = mt_n * nt_n * 4
    FR = ACC + nacc
    FSET = (mt_n + 4) * 4
    ST = FR + 2*FSET
    SSET = (nA + 4) * 4
    NV = ST + 2*SSET
    for r in range(nacc):
        A("v_mov_b32 v%d, 0" % (ACC + r))
    def gload(st):
        for i in range(nA):
            A("buffer_load_dwordx4 %s, v7, s[40:43], s%d offen" % (vr(ST+st*SSET+4*i, 4), 64+i))
        for i in range(4):
            A("buffer_load_dwordx4 %s, v10, s[60:63], s%d offen" % (vr(ST+st*SSET+4*(nA+i), 4), 68+i))
        A("v_add_u32 v7, 128, v7")
        A("v_add_u32 v10, %d, v10" % (64*ldb))
    def lwrite(st, buf):
        for i in range(nA):
            A("ds_write_b128 v8, %s offset:%d" % (vr(ST+st*SSET+4*i, 4), buf*STAGE + i*32*ASTR))
        for i in range(4):
            A("ds_write_b128 v11, %s offset:%d" % (vr(ST+st*SSET+4*(nA+i), 4), buf*STAGE + i*16*BSTR))
    def freads(ks, fset, buf):
        base = FR + fset*FSET
        for nt in range(4):
            for t in range(2):
                A("ds_read_b64_tr_b16 %s, v13 offset:%d" % (vr(base + mt_n*4 + nt*4 + 2*t, 2), buf*STAGE + (ks*32+16*t)*BSTR + ncols[nt]*2))
        for mt in range(mt_n):
            for t in range(2):
                A("ds_read_b64 %s, v12 offset:%d" % (vr(base + mt*4 + 2*t, 2), buf*STAGE + mt*16*ASTR + ks*64 + t*32))
    def mfmas(fset):
        base = FR + fset*FSET
        for mt in range(mt_n):
            for nt in range(4):
                acc = vr(ACC + (mt*4+nt)*4, 4)
                A("v_mfma_f32_16x16x32_bf16 %s, %s, %s, %s" % (acc, vr(base + mt_n*4 + nt*4, 4), vr(base + mt*4, 4), acc))
    nl = nA + 4
    gload(0)
    gload(1)
    A("s_waitcnt vmcnt(%d)" % nl)
    lwrite(0, 0)
    A("s_waitcnt lgkmcnt(0)")
    A("s_barrier")
    for k in range(NK):
        if k + 2 < NK:
            gload(k & 1)
        freads(0, 0, k & 1)
        A("s_waitcnt lgkmcnt(0)")
        freads(1, 1, k & 1)
        mfmas(0)
        A("s_waitcnt lgkmcnt(0)")
        mfmas(1)
        if k + 1 < NK:
            A("s_waitcnt vmcnt(%d)" % (nl if k + 2 < NK else 0))
            lwrite((k+1) & 1, (k+1) & 1)
            A("s_waitcnt lgkmcnt(0)")
            A("s_barrier")
    A("s_nop 7")
    A("s_nop 7")
    A("s_mul_i32 s7, s4, %d" % BM)
    A("s_mul_i32 s12, s10, %d" % TM)
    A("s_add_u32 s7, s7, s12")
    A("v_add_u32 v5, s7, v3")
    T0 = ST
    if geglu:
        A("v_mul_u32_u24 v5, %d, v5" % ldc)
        A("s_lshl_b32 s12, s5, 7")
        A("s_lshl_b32 s13, s11, 6")
        A("s_add_u32 s12, s12, s13")
        A("v_lshl_add_u32 v5, v4, 3, v5")
        A("v_add_u32 v5, s12, v5")
        A("v_mov_b32 v6, 0x3d372713")
        for mt in range(mt_n):
            for nt in range(2):
                g = ACC + (mt*4+nt)*4
                u = ACC + (mt*4+nt+2)*4
                for r in range(4):
                    t = T0 + r
                    A("v_mul_f32 v%d, v%d, v%d" % (t, g+r, g+r))
                    A("v_fma_f32 v%d, v%d, v6, 1.0" % (t, t))
                    A("v_mul_f32 v%d, v%d, v%d" % (t, t, g+r))
                    A("v_mul_f32 v%d, 0xc0135761, v%d" % (t, t))
                    A("v_exp_f32 v%d, v%d" % (t, t))
                    A("s_nop 0")
                    A("v_add_f32 v%d, 1.0, v%d" % (t, t))
                    A("v_rcp_f32 v%d, v%d" % (t, t))
                    A("s_nop 0")
                    A("v_mul_f32 v%d, v%d, v%d" % (t, t, g+r))
                    A("v_mul_f32 v%d, v%d, v%d" % (t, t, u+r))
                A("v_cvt_pk_bf16_f32 v%d, v%d, v%d" % (T0+4, T0, T0+1))
                A("v_cvt_pk_bf16_f32 v%d, v%d, v%d" % (T0+5, T0+2, T0+3))
                A("buffer_store_dwordx2 %s, v5, s[52:55], 0 offen offset:%d" % (vr(T0+4, 2), nt*32))
                A("s_nop 1")
            if mt + 1 < mt_n:
                A("v_add_u32 v5, %d, v5" % (16*ldc))
    else:
        A("v_mul_u32_u24 v5, %d, v5" % ldc)
        A("s_lshl_b32 s12, s5, 8")
        A("s_lshl_b32 s13, s11, 7")
        A("s_add_u32 s12, s12, s13")
        A("v_lshl_add_u32 v5, v4, 3, v5")
        A("v_add_u32 v5, s12, v5")
        for mt in range(mt_n):
            if epi == "resid":
                for nt in range(4):
                    A("buffer_load_dwordx2 %s, v5, s[56:59], 0 offen offset:%d" % (vr(T0+2*nt, 2), nt*32))
                A("s_waitcnt vmcnt(0)")
            for nt in range(4):
                a = ACC + (mt*4+nt)*4
                if epi == "resid":
                    for r in range(2):
                        A("v_lshlrev_b32 v%d, 16, v%d" % (T0+8, T0+2*nt+r))
                        A("v_and_b32 v%d, 0xffff0000, v%d" % (T0+9, T0+2*nt+r))
                        A("v_add_f32 v%d, v%d, v%d" % (a+2*r, a+2*r, T0+8))
                        A("v_add_f32 v%d, v%d, v%d" % (a+2*r+1, a+2*r+1, T0+9))
                A("v_cvt_pk_bf16_f32 v%d, v%d, v%d" % (T0+10, a, a+1))
                A("v_cvt_pk_bf16_f32 v%d, v%d, v%d" % (T0+11, a+2, a+3))
                A("buffer_store_dwordx2 %s, v5, s[52:55], 0 offen offset:%d" % (vr(T0+10, 2), nt*32))
                A("s_nop 1")
            if mt + 1 < mt_n:
                A("v_add_u32 v5, %d, v5" % (16*ldc))
    A.label(name + "_end")
    A("s_endpgm")
    nv = max(NV, ST+12)
    A.kernels.append((name, (nv+7)//8*8, 80, (nv+7)//8*8))
    return nwg, 2*STAGE


def pkfma(dst, sreg, w):
    base = sreg & ~1
    sel = sreg & 1
    A("v_pk_fma_f32 v[%d:%d], v[%d:%d], v[%d:%d], v[%d:%d] op_sel:[%d,0,0] op_sel_hi:[%d,1,1]" % (dst, dst+1, base, base+1, w, w+1, dst, dst+1, sel, sel))

def emit_phi(src_regs, W_lds_base_v, P, tmp):
    for f in range(20):
        A("v_mov_b32 v%d, 0" % (P+f))
    WB = [tmp+4, tmp+24]
    def wread(d):
        for fq in range(5):
            A("ds_read_b128 %s, v%d offset:%d" % (vr(WB[d & 1]+4*fq, 4), W_lds_base_v, (d*20 + fq*4)*4))
    wread(0)
    for d in range(20):
        if d + 1 < 20:
            wread(d+1)
            A("s_waitcnt lgkmcnt(5)")
        else:
            A("s_waitcnt lgkmcnt(0)")
        for f in range(0, 20, 2):
            pkfma(P+f, src_regs[d], WB[d & 1]+f)
    for f in range(0, 20, 2):
        A("v_cvt_pk_bf16_f32 v%d, v%d, v%d" % (tmp, P+f, P+f+1))
        A("v_lshlrev_b32 v%d, 16, v%d" % (P+f, tmp))
        A("v_and_b32 v%d, 0xffff0000, v%d" % (P+f+1, tmp))
    mx, mn = tmp, tmp+1
    A("v_max_f32 v%d, v%d, v%d" % (mx, P, P+1))
    A("v_min_f32 v%d, v%d, v%d" % (mn, P, P+1))
    for f in range(2, 20):
        A("v_max_f32 v%d, v%d, v%d" % (mx, mx, P+f))
        A("v_min_f32 v%d, v%d, v%d" % (mn, mn, P+f))
    L2E = "0x3fb8aa3b"
    for f in range(20):
        A("v_sub_f32 v%d, v%d, v%d" % (P+20+f, mn, P+f))
        A("v_mul_f32 v%d, %s, v%d" % (P+20+f, L2E, P+20+f))
        A("v_exp_f32 v%d, v%d" % (P+20+f, P+20+f))
        A("v_sub_f32 v%d, v%d, v%d" % (P+f, P+f, mx))
        A("v_mul_f32 v%d, %s, v%d" % (P+f, L2E, P+f))
        A("v_exp_f32 v%d, v%d" % (P+f, P+f))
    s1, s2 = tmp+2, tmp+3
    A("s_nop 0")
    A("v_add_f32 v%d, v%d, v%d" % (s1, P, P+1))
    A("v_add_f32 v%d, v%d, v%d" % (s2, P+20, P+21))
    for f in range(2, 20):
        A("v_add_f32 v%d, v%d, v%d" % (s1, s1, P+f))
        A("v_add_f32 v%d, v%d, v%d" % (s2, s2, P+20+f))
    A("v_rcp_f32 v%d, v%d" % (s1, s1))
    A("v_rcp_f32 v%d, v%d" % (s2, s2))
    A("s_nop 0")
    for f in range(20):
        A("v_mul_f32 v%d, v%d, v%d" % (P+f, P+f, s1))
        A("v_mul_f32 v%d, v%d, v%d" % (P+20+f, P+20+f, s2))

def emit_load_wphi(lds_base_bytes):
    make_srd(48, "wphi", 0, H*400*2)
    A("s_mul_i32 s7, s4, 800")
    A("v_lshlrev_b32 v40, 2, v0")
    A("v_cmp_gt_u32 vcc, 200, v0")
    A("s_and_saveexec_b64 s[8:9], vcc")
    A("buffer_load_dword v41, v40, s[48:51], s7 offen")
    A("s_waitcnt vmcnt(0)")
    A("v_lshlrev_b32 v42, 16, v41")
    A("v_and_b32 v43, 0xffff0000, v41")
    A("v_lshlrev_b32 v40, 3, v0")
    A("ds_write_b64 v40, v[42:43] offset:%d" % lds_base_bytes)
    A("s_mov_b64 exec, s[8:9]")

def unpack20(dst, src):
    for i in range(10):
        A("v_lshlrev_b32 v%d, 16, v%d" % (dst+2*i, src+i))
        A("v_and_b32 v%d, 0xffff0000, v%d" % (dst+2*i+1, src+i))

KV_PHI = 2048; KV_V = 2048 + 48*512
def gen_kv(name):
    kernel_begin(name)
    A("s_cmp_ge_u32 s2, 256")
    A("s_cbranch_scc1 %s_end" % name)
    load_ptrs()
    A("s_and_b32 s4, s2, 31")
    A("s_lshr_b32 s5, s2, 5")
    emit_load_wphi(0)
    make_srd(40, "ws", WS_QKV, M*1920*2)
    make_srd(44, "ws", WS_KVP, 8*32*48*32*4)
    A("s_lshl_b32 s6, s5, 8")
    A("v_add_u32 v1, s6, v0")
    A("v_mul_u32_u24 v1, 3840, v1")
    A("s_mul_i32 s7, s4, 40")
    A("s_add_u32 s7, s7, 1280")
    A("v_add_u32 v1, s7, v1")
    for i in range(5):
        A("buffer_load_dwordx2 %s, v1, s[40:43], 0 offen offset:%d" % (vr(44+2*i, 2), 8*i))
    for i in range(5):
        A("buffer_load_dwordx2 %s, v1, s[40:43], 0 offen offset:%d" % (vr(54+2*i, 2), 1280+8*i))
    A("s_waitcnt vmcnt(0) lgkmcnt(0)")
    A("s_barrier")
    unpack20(64, 44)
    A("v_mov_b32 v2, 0")
    emit_phi([64+d for d in range(20)], 2, 84, 124)
    A("v_lshlrev_b32 v3, 1, v0")
    for f in range(0, 40, 2):
        A("v_cvt_pk_bf16_f32 v4, v%d, v%d" % (84+f, 85+f))
        A("ds_write_b16 v3, v4 offset:%d" % (KV_PHI + f*512))
        A("ds_write_b16_d16_hi v3, v4 offset:%d" % (KV_PHI + (f+1)*512))
    for i in range(10):
        A("ds_write_b16 v3, v%d offset:%d" % (54+i, KV_V + (2*i)*512))
        A("ds_write_b16_d16_hi v3, v%d offset:%d" % (54+i, KV_V + (2*i+1)*512))
    A("v_mov_b32 v4, 0x3f80")
    A("ds_write_b16 v3, v4 offset:%d" % (KV_V + 20*512))
    A("s_waitcnt lgkmcnt(0)")
    A("s_barrier")
    A("v_cmp_gt_u32 vcc, 64, v0")
    A("s_and_saveexec_b64 s[8:9], vcc")
    A("s_cbranch_execz %s_end" % name)
    A("v_and_b32 v5, 15, v0")
    A("v_lshrrev_b32 v6, 4, v0")
    A("v_lshlrev_b32 v7, 9, v5")
    A("v_lshl_add_u32 v7, v6, 4, v7")
    for r in range(24):
        A("v_mov_b32 v%d, 0" % (128+r))
    for ks in range(8):
        for mt in range(3):
            A("ds_read_b128 %s, v7 offset:%d" % (vr(152+4*mt, 4), KV_PHI + mt*16*512 + ks*64))
        for nt in range(2):
            A("ds_read_b128 %s, v7 offset:%d" % (vr(164+4*nt, 4), KV_V + nt*16*512 + ks*64))
        A("s_waitcnt lgkmcnt(0)")
        for mt in range(3):
            for nt in range(2):
                acc = vr(128 + (mt*2+nt)*4, 4)
                A("v_mfma_f32_16x16x32_bf16 %s, %s, %s, %s" % (acc, vr(152+4*mt, 4), vr(164+4*nt, 4), acc))
        A("s_nop 7")
    A("s_nop 7")
    A("s_nop 7")
    A("s_lshl_b32 s6, s2, 0")
    A("s_mul_i32 s6, s2, %d" % (48*32*4))
    A("v_lshlrev_b32 v8, 9, v6")
    A("v_lshl_add_u32 v8, v5, 2, v8")
    A("v_add_u32 v8, s6, v8")
    for mt in range(3):
        for nt in range(2):
            for r in range(4):
                A("buffer_store_dword v%d, v8, s[44:47], 0 offen offset:%d" % (128+(mt*2+nt)*4+r, r*128 + nt*64))
        A("v_add_u32 v8, 2048, v8")
    A.label(name + "_end")
    A("s_endpgm")
    A.kernels.append((name, 176, 64, 176))
    return 256, KV_V + 32*512

AT_KV = 2048
def gen_att(name):
    kernel_begin(name)
    A("s_cmp_ge_u32 s2, 256")
    A("s_cbranch_scc1 %s_end" % name)
    load_ptrs()
    A("s_and_b32 s4, s2, 31")
    A("s_lshr_b32 s5, s2, 5")
    emit_load_wphi(0)
    make_srd(40, "ws", WS_QKV, M*1920*2)
    make_srd(44, "ws", WS_KVP, 8*32*48*32*4)
    make_srd(52, "ws", WS_O, M*D*2)
    A("s_lshl_b32 s6, s5, 8")
    A("v_add_u32 v1, s6, v0")
    A("v_mul_u32_u24 v1, 3840, v1")
    A("s_mul_i32 s7, s4, 40")
    A("v_add_u32 v1, s7, v1")
    for i in range(5):
        A("buffer_load_dwordx2 %s, v1, s[40:43], 0 offen offset:%d" % (vr(44+2*i, 2), 8*i))
    A("s_mul_i32 s7, s4, %d" % (48*32*4))
    A("v_lshlrev_b32 v2, 2, v0")
    A("v_add_u32 v6, 4096, v2")
    for j in range(5):
        A("v_mov_b32 v%d, 0" % (54+j))
    for tb in range(8):
        for j in range(5):
            A("buffer_load_dword v%d, v%d, s[44:47], s7 offen offset:%d" % (60+j, 2 if j < 4 else 6, (j % 4)*1024))
        A("s_waitcnt vmcnt(0)")
        for j in range(5):
            A("v_add_f32 v%d, v%d, v%d" % (54+j, 54+j, 60+j))
        A("s_add_u32 s7, s7, %d" % (32*48*32*4))
    A("v_and_b32 v3, 31, v0")
    A("v_lshrrev_b32 v4, 5, v0")
    A("v_mul_u32_u24 v4, 96, v4")
    A("v_lshl_add_u32 v4, v3, 2, v4")
    A("v_cmp_gt_u32 vcc, 24, v3")
    A("s_and_saveexec_b64 s[8:9], vcc")
    for j in range(5):
        A("v_cvt_pk_bf16_f32 v5, v%d, v%d" % (54+j, 54+j))
        A("v_and_b32 v5, 0xffff0000, v5")
        A("ds_write_b32 v4, v5 offset:%d" % (AT_KV + j*8*96))
    A("s_mov_b64 exec, s[8:9]")
    A("s_waitcnt vmcnt(0) lgkmcnt(0)")
    A("s_barrier")
    unpack20(64, 44)
    A("v_mov_b32 v2, 0")
    emit_phi([64+d for d in range(20)], 2, 84, 124)
    for f in range(0, 40, 2):
        A("v_cvt_pk_bf16_f32 v124, v%d, v%d" % (84+f, 85+f))
        A("v_lshlrev_b32 v%d, 16, v124" % (84+f))
        A("v_and_b32 v%d, 0xffff0000, v124" % (85+f))
    for d in range(20):
        A("v_mov_b32 v%d, 0" % (64+d))
    A("v_mov_b32 v128, 0x358637bd")
    KB = [168, 192]
    def kread(f):
        for q in range(6):
            A("ds_read_b128 %s, v2 offset:%d" % (vr(KB[f & 1]+4*q, 4), AT_KV + f*96 + q*16))
    kread(0)
    for f in range(40):
        if f + 1 < 40:
            kread(f+1)
            A("s_waitcnt lgkmcnt(6)")
        else:
            A("s_waitcnt lgkmcnt(0)")
        for d in range(0, 20, 2):
            pkfma(64+d, 84+f, KB[f & 1]+d)
        A("v_fmac_f32 v128, v%d, v%d" % (84+f, KB[f & 1]+20))
    A("v_rcp_f32 v128, v128")
    A("s_nop 0")
    for d in range(20):
        A("v_mul_f32 v%d, v%d, v128" % (64+d, 64+d))
    for i in range(10):
        A("v_cvt_pk_bf16_f32 v%d, v%d, v%d" % (44+i, 64+2*i, 65+2*i))
    A("s_lshl_b32 s6, s5, 8")
    A("v_add_u32 v1, s6, v0")
    A("v_mul_u32_u24 v1, 1280, v1")
    A("s_mul_i32 s7, s4, 40")
    A("v_add_u32 v1, s7, v1")
    for i in range(5):
        A("buffer_store_dwordx2 %s, v1, s[52:55], 0 offen offset:%d" % (vr(44+2*i, 2), 8*i))
    A.label(name + "_end")
    A("s_endpgm")
    A.kernels.append((name, 216, 64, 216))
    return 256, 2048 + 40*96

launches = []
def add(name, nwg, lds):
    launches.append("; @launch kernel=%s grid=(%d,1,1) block=(256,1,1) lds=%d" % (name, nwg, lds))

for L in range(2):
    xin = ("x", 0) if L == 0 else ("ws", WS_X2)
    xout = ("ws", WS_X2) if L == 0 else ("out", 0)
    n = "ln1_%d_kernel" % L; gen_ln(n, xin, ("ws", WS_XN)); add(n, M//4, 0)
    n = "qkv_%d_kernel" % L
    g, l = gen_gemm(n, 64, 1920, 640, ("ws", WS_XN), 1280, [("wqkv", 0)], 3840, ("ws", WS_QKV), 3840, "store", csize=M*1920*2, asize=M*D*2); add(n, g, l)
    n = "kv_%d_kernel" % L; g, l = gen_kv(n); add(n, g, l)
    n = "att_%d_kernel" % L; g, l = gen_att(n); add(n, g, l)
    n = "wo_%d_kernel" % L
    g, l = gen_gemm(n, 64, 640, 640, ("ws", WS_O), 1280, [("wo", 0)], 1280, ("ws", WS_X1), 1280, "resid", r_src=xin, csize=M*D*2, asize=M*D*2); add(n, g, l)
    n = "ln2_%d_kernel" % L; gen_ln(n, ("ws", WS_X1), ("ws", WS_XN)); add(n, M//4, 0)
    n = "gu_%d_kernel" % L
    g, l = gen_gemm(n, 128, 1728, 640, ("ws", WS_XN), 1280, [("gate", 0), ("up", 0)], 3456, ("ws", WS_H), 3456, "geglu", csize=M*DF*2, asize=M*D*2); add(n, g, l)
    n = "down_%d_kernel" % L
    g, l = gen_gemm(n, 64, 640, 1728, ("ws", WS_H), 3456, [("down", 0)], 1280, xout, 1280, "resid", r_src=("ws", WS_X1), csize=M*D*2, asize=M*DF*2); add(n, g, l)

out = []
out += launches
out.append('.amdgcn_target "amdgcn-amd-amdhsa--gfx950"')
out.append(".text")
out += A.lines
out.append('.section .rodata,"a"')
for (name, nv, ns, acc) in A.kernels:
    out.append(".p2align 6")
    out.append(".amdhsa_kernel %s" % name)
    out.append("  .amdhsa_next_free_vgpr %d" % nv)
    out.append("  .amdhsa_next_free_sgpr %d" % ns)
    out.append("  .amdhsa_accum_offset %d" % acc)
    out.append("  .amdhsa_group_segment_fixed_size 0")
    out.append("  .amdhsa_kernarg_size 88")
    out.append("  .amdhsa_user_sgpr_count 2")
    out.append("  .amdhsa_user_sgpr_kernarg_segment_ptr 1")
    out.append("  .amdhsa_system_sgpr_workgroup_id_x 1")
    out.append(".end_amdhsa_kernel")
open(sys.argv[1] if len(sys.argv) > 1 else "interleave_layers__linear_kernel_hedgehog__glu_gated_geglu__prompt.s", "w").write("\n".join(out) + "\n")
```
